```python
import torch

def _softmax(x, axis=-1):
    return torch.softmax(x, dim=axis)
def _gelu(x):
    return torch.nn.functional.gelu(x, approximate="tanh")
def _silu(x):
    return torch.nn.functional.silu(x)
def _sigmoid(x):
    return torch.sigmoid(x)
def _layernorm(x, axis=-1, eps=1e-5):
    m = x.mean(dim=axis, keepdim=True)
    v = x.var(dim=axis, keepdim=True, unbiased=False)
    return (x - m) / torch.sqrt(v + eps)
def _scatter_add(tgt, idx, src, axis=0):
    return tgt.clone().index_add_(axis, idx, src)
def _segment_sum(src, seg, n):
    out = torch.zeros((n,) + src.shape[1:], dtype=src.dtype)
    return out.index_add_(0, seg, src)
def _pad(x, pw):
    flat = tuple(v for pair in reversed(pw) for v in pair)
    return torch.nn.functional.pad(x, flat)

kernel_name = 'standalone__modern_conv_block_slak__vision'

def setup_inputs():

    _w = (lambda a: (lambda t: t.to(torch.bfloat16) if t.is_floating_point() else t)(torch.as_tensor(a)))
    H = W = 224
    C = 96
    K = 7
    return {
        "x": _w((lambda *s: torch.randn(*s, dtype=torch.bfloat16) * 0.05)(1, H, W, C)),
        "dw": _w((lambda *s: torch.randn(*s, dtype=torch.bfloat16) * 0.05)(K, K, C)),
        "w1": _w((lambda *s: torch.randn(*s, dtype=torch.bfloat16) * 0.05)(C, 4 * C)),
        "w2": _w((lambda *s: torch.randn(*s, dtype=torch.bfloat16) * 0.05)(4 * C, C)),
        "grn_g": _w((lambda *s: torch.randn(*s, dtype=torch.bfloat16) * 0.05)(4 * C)),
        "grn_b": _w((lambda *s: torch.randn(*s, dtype=torch.bfloat16) * 0.05)(4 * C)),
    }

def reference(x, dw, w1, w2, grn_g, grn_b):
    B, H, W, C = x.shape
    K = dw.shape[0]
    pad = K // 2
    xp = _pad(x, ((0,0),(pad,pad),(pad,pad),(0,0)))
    out = torch.zeros_like(x)
    for i in range(K):
        for j in range(K):
            out = out + xp[:, i:i+H, j:j+W, :] * dw[i, j][None, None, None, :]
    h = _layernorm(out, axis=-1)
    h = _gelu(h @ w1)
    gx = torch.sqrt((h * h).sum(axis=(1, 2), keepdims=True) + 1e-6)
    nx = gx / (gx.mean(axis=-1, keepdims=True) + 1e-6)
    h = grn_g[None, None, None, :] * (h * nx) + grn_b[None, None, None, :] + h
    return x + h @ w2
```

```python
import sys, os, subprocess, struct
sys.path.insert(0, "cdna_kernels")
import numpy as np

HEAD = """; @launch grid=(1,1,1) block=(512,1,1) lds={lds}
.amdgcn_target "amdgcn-amd-amdhsa--gfx950"
.text
.globl mb_kernel
.p2align 8
.type mb_kernel,@function
mb_kernel:
    s_load_dwordx2 s[4:5], s[0:1], 0
    s_load_dwordx2 s[6:7], s[0:1], 8
    s_waitcnt lgkmcnt(0)
    s_mov_b32 s8, s4
    s_mov_b32 s9, s5
    s_mov_b32 s10, 0x100000
    s_mov_b32 s11, 0x00020000
    s_mov_b32 s12, s6
    s_mov_b32 s13, s7
    s_mov_b32 s14, 0x100000
    s_mov_b32 s15, 0x00020000
    v_lshrrev_b32 v1, 6, v0
    s_nop 0
    v_readfirstlane_b32 s20, v1
    v_and_b32 v2, 63, v0             ; lane
{init}
    s_mov_b32 s16, {iters}
    s_barrier
    s_memtime s[24:25]
    s_waitcnt lgkmcnt(0)
.p2align 6
L_loop:
{body}
    s_sub_u32 s16, s16, 1
    s_cmp_lg_u32 s16, 0
    s_cbranch_scc1 L_loop
    s_waitcnt vmcnt(0) lgkmcnt(0)
    s_nop 15
    s_memtime s[26:27]
    s_waitcnt lgkmcnt(0)
    s_sub_u32 s26, s26, s24
    s_subb_u32 s27, s27, s25
    s_lshl_b32 s21, s2, 4
    s_add_u32 s21, s21, s20
    s_lshl_b32 s21, s21, 2
    v_mov_b32 v3, s21
    v_mov_b32 v4, s26
    v_cmp_eq_u32 vcc, 0, v2
    s_and_saveexec_b64 s[28:29], vcc
    buffer_store_dword v4, v3, s[12:15], 0 offen
    s_waitcnt vmcnt(0)
{post}
    s_endpgm
.section .rodata,"a"
.p2align 6
.amdhsa_kernel mb_kernel
  .amdhsa_next_free_vgpr {nvgpr}
  .amdhsa_next_free_sgpr 64
  .amdhsa_accum_offset {nvgpr}
  .amdhsa_group_segment_fixed_size 0
  .amdhsa_kernarg_size 16
  .amdhsa_user_sgpr_count 2
  .amdhsa_user_sgpr_kernarg_segment_ptr 1
  .amdhsa_system_sgpr_workgroup_id_x 1
.end_amdhsa_kernel
"""

def build(name, body, init="", post="", iters=200, lds=0, nvgpr=128):
    from cdna_launch import with_harness_metadata
    asm = HEAD.format(body=body, init=init, post=post, iters=iters, lds=lds, nvgpr=nvgpr)
    full = with_harness_metadata(asm, "mb_kernel", 2)
    os.makedirs("mbout", exist_ok=True)
    s = f"mbout/{name}.s"; co = f"mbout/{name}.co"
    open(s, "w").write(full)
    r = subprocess.run(["clang", "-x", "assembler", "-target", "amdgcn-amd-amdhsa", "-mcpu=gfx950", s, "-o", co], capture_output=True, text=True)
    if r.returncode != 0:
        print(r.stderr[:3000]); raise SystemExit(1)
    return co

def run(co, threads, grid=1, lds=0, inp=None, reps=3):
    from cdna_launch import AsmKernel, DeviceBuffer, pack_ptr_kernargs, _hip, hip_check
    k = AsmKernel(co, "mb_kernel")
    if inp is None:
        inp = np.zeros(0x100000 // 4, dtype=np.uint32)
    din = DeviceBuffer.from_numpy(inp)
    dout = DeviceBuffer.from_numpy(np.zeros(0x100000 // 4, dtype=np.uint32))
    ka = pack_ptr_kernargs([din.ptr, dout.ptr])
    for _ in range(reps):
        k.launch((grid, 1, 1), (threads, 1, 1), ka, lds)
        hip_check(_hip.hipDeviceSynchronize())
    out = dout.to_numpy(np.uint32, (0x100000 // 4,))
    k.unload()
    return out
```

```python
from mb import *
import sys
init = "\n".join(f"    v_mov_b32 v{i}, 1.0" for i in range(4, 128)) + "\n    v_lshlrev_b32 v3, 3, v2\n    v_and_b32 v5, 15, v2\n    v_lshlrev_b32 v5, 2, v5\n    v_add_u32 v5, 0x8000, v5\n    s_mov_b32 s40, 1.0\n    s_mov_b32 s41, 1.0\n"
def unit(i, ntr=6, atom=1, place="after_m"):
    W = 20 + 12 * (i % 2); Wn = 20 + 12 * ((i + 1) % 2)
    h = lambda j: 44 + 4 * (j % 4)
    T = lambda j: 60 + 4 * (j % 2)
    o = []
    tr = [f"    ds_read_b64_tr_b16 v[{Wn+2*k}:{Wn+2*k+1}], v3 offset:{(i%8)*3072 + k*512}" for k in range(ntr)]
    H2 = h(i + 2); H0 = h(i); T1 = T(i + 1); T0 = T(i)
    m = [f"    v_mfma_f32_16x16x32_bf16 v[{H2}:{H2+3}], v[{8+4*k}:{11+4*k}], v[{W+4*k}:{W+4*k+3}], {'0' if k == 0 else f'v[{H2}:{H2+3}]'}" for k in range(3)]
    e = [f"    v_exp_f32 v{T1+k}, v{T1+k}" for k in range(4)]
    r = [f"    v_rcp_f32 v{T0+k}, v{T0+k}" for k in range(4)]
    o.append(f"    s_waitcnt lgkmcnt({atom})")
    if place == "after_m":
        o += [m[0], r[0], m[1], r[1], m[2]]
        o += tr[:ntr]
        o += [r[2], r[3]] + e
    else:
        o += [m[0]]
        o += [r[0], m[1], r[1], m[2], r[2], r[3]] + e
    pkb = [f"    v_pk_mul_f32 v[{H0}:{H0+1}], v[{H0}:{H0+1}], v[{T0}:{T0+1}]",
          f"    v_pk_mul_f32 v[{H0+2}:{H0+3}], v[{H0+2}:{H0+3}], v[{T0+2}:{T0+3}]",
          f"    v_pk_add_f32 v[{T1}:{T1+1}], v[{T1}:{T1+1}], 1.0 op_sel_hi:[1,0]",
          f"    v_pk_add_f32 v[{T1+2}:{T1+3}], v[{T1+2}:{T1+3}], 1.0 op_sel_hi:[1,0]",
          f"    v_pk_mul_f32 v[68:69], v[{H0}:{H0+1}], v[{H0}:{H0+1}]",
          f"    v_pk_fma_f32 v[68:69], v[{H0+2}:{H0+3}], v[{H0+2}:{H0+3}], v[68:69]",
          f"    v_pk_fma_f32 v[{T0}:{T0+1}], v[{H2}:{H2+1}], v[{H2}:{H2+1}], s[40:41]",
          f"    v_pk_fma_f32 v[{T0+2}:{T0+3}], v[{H2+2}:{H2+3}], v[{H2+2}:{H2+3}], s[40:41]",
          f"    v_add_f32 v70, v68, v69",
          f"    v_pk_mul_f32 v[{T0}:{T0+1}], v[{T0}:{T0+1}], v[{H2}:{H2+1}] neg_lo:[1,0] neg_hi:[1,0]",
          f"    v_pk_mul_f32 v[{T0+2}:{T0+3}], v[{T0+2}:{T0+3}], v[{H2+2}:{H2+3}] neg_lo:[1,0] neg_hi:[1,0]"]
    if place == "pk":
        o += tr
    o += pkb
    if atom: o.append(f"    ds_add_f32 v5, v70 offset:{(i%8)*64}")
    return "\n".join(o)
tests = {
 "Z": ("\n".join(unit(i) for i in range(8)), 8),
 "Z_noatom": ("\n".join(unit(i, atom=0) for i in range(8)), 8),
 "Z_pk": ("\n".join(unit(i, place="pk") for i in range(8)), 8),
 "Y2tr": ("\n".join(unit(i, ntr=2) for i in range(8)), 8),
 "notr": ("\n".join(unit(i, ntr=0, atom=0) for i in range(8)), 8),
}
if __name__ == "__main__":
    mode = sys.argv[1]
    for name, (body, units) in tests.items():
        if mode == "build":
            build(name, body, init=init, lds=65536)
        else:
            res = []
            for w in (1, 2, 3, 4):
                out = run(f"mbout/{name}.co", 256 * w, lds=65536)
                cyc = out[:4*w].astype(np.float64)
                res.append(cyc.max() / 200 / units / w)
            print(f"{name:10s} cycles per unit per SIMD (1,2,3,4 waves/SIMD):", " ".join(f"{r:7.2f}" for r in res), flush=True)
```

```python
from mb import *
import sys, re
L = open("k3.s").read().split("\n")
idx = [i for i, l in enumerate(L) if "s_barrier" in l]
st = idx[int(sys.argv[2])] + 1
en = [i for i, l in enumerate(L) if "s_cbranch_scc1 L_late" in l][0]
seg = L[st:en]
out = []; skip = None
for l in seg:
    t = l.strip()
    if skip:
        if t == skip + ":": skip = None
        continue
    if t.startswith("s_cbranch"): skip = t.split()[1]; continue
    out.append(l)
seg = out
init = "\n".join(f"    v_mov_b32 v{i}, 1.0" for i in range(14, 256)) + """
    v_lshlrev_b32 v4, 3, v2
    v_mov_b32 v5, v4
    v_mov_b32 v10, v4
    v_mov_b32 v11, v4
    v_lshrrev_b32 v0, 4, v2
    v_lshlrev_b32 v0, 4, v0
    v_mov_b32 v6, v2
    v_lshlrev_b32 v12, 4, v2
    v_lshlrev_b32 v13, 4, v2
    v_mov_b32 v2, v0
""" + "\n".join(f"    s_mov_b32 s{i}, 0" for i in range(30, 64)) + "\n"
def remap(l):
    return re.sub(r"\bs(\d+)\b", lambda m: "s%d" % (30 + int(m.group(1)) % 30 if int(m.group(1)) >= 60 else int(m.group(1))), l)
seg = [remap(l) for l in seg]
post = ""
def variant(f): return "\n".join(f(seg)) + "\n    s_waitcnt lgkmcnt(0)\n    v_mov_b32 v2, v0\n"
tests = {
 "full": variant(lambda s: s),
 "nowait": variant(lambda s: [l for l in s if "s_waitcnt" not in l]),
 "nods": variant(lambda s: [l for l in s if "ds_" not in l]),
 "noro": variant(lambda s: [l for l in s if "ds_write" not in l and "exec" not in l]),
 "novalu": variant(lambda s: [l for l in s if not re.match(r"\s*v_(fma|cvt|pk)", l)]),
 "nomfma": variant(lambda s: [l for l in s if "mfma" not in l]),
 "nocvt": variant(lambda s: [l for l in s if "v_cvt" not in l]),
 "indep": variant(lambda s: [re.sub(r"(ds_read_b64_tr_b16 )v\[(\d+):(\d+)\]", lambda m: m.group(1) + "v[%d:%d]" % (236 + int(m.group(2)) % 12, 237 + int(m.group(2)) % 12), l) for l in s if "s_waitcnt" not in l]),
 "nofma": variant(lambda s: [l for l in s if "v_fma" not in l]),
}
import mb
mb.HEAD = mb.HEAD.replace("v_cmp_eq_u32 vcc, 0, v2", "v_cmp_eq_u32 vcc, 0, v6").replace("block=(1024,1,1)", "block=(512,1,1)")
if __name__ == "__main__":
    mode = sys.argv[1]
    print("instrs", len(seg))
    for name, body in tests.items():
        if mode == "build":
            build("pb_" + name, body, init=init, lds=65536, iters=50, nvgpr=256)
        else:
            res = []
            for w in (1, 2):
                out = run(f"mbout/pb_{name}.co", 256 * w, lds=65536)
                cyc = out[:4*w].astype(np.float64)
                res.append(cyc.max() / 50)
            print(f"{name:10s} cycles per pass (1,2 waves/SIMD):", " ".join(f"{r:7.0f}" for r in res), flush=True)
```

```python
from mb import *
import mb
import sys, re
L = open(sys.argv[2] if len(sys.argv) > 2 else "k3.s").read().split("\n")
idx = [i for i, l in enumerate(L) if "s_barrier" in l]
st = idx[5]
en = [i for i, l in enumerate(L) if l.startswith("L_join:")][0] + 1
seg = [l for l in L[st:en] if "buffer_" not in l and "vmcnt" not in l]
init = "\n".join(f"    v_mov_b32 v{i}, 1.0" for i in range(16, 256)) + """
    v_lshlrev_b32 v4, 3, v2
    v_add_u32 v4, 73728, v4
    v_add_u32 v5, 9216, v4
    v_add_u32 v10, 9216, v5
    v_add_u32 v11, 9216, v10
    s_and_b32 s61, s20, 3
    s_mul_i32 s61, s61, 18432
    v_lshl_add_u32 v12, v2, 4, s61
    v_lshlrev_b32 v15, 4, v2
    v_add_u32 v13, 147456, v15
    v_lshrrev_b32 v0, 4, v2
    v_lshlrev_b32 v0, 4, v0
    v_add_u32 v0, 159744, v0
    v_mov_b32 v6, v2
    v_mov_b32 v2, v0
    s_mov_b32 s60, s20
""" + "\n".join(f"    s_mov_b32 s{i}, 0" for i in range(62, 100)) + "\n"
seg = [re.sub(r"s\[8:9\]", "s[62:63]", l) for l in seg]
def variant(f): return "\n".join(f(seg)) + "\n    s_waitcnt lgkmcnt(0)\n    v_mov_b32 v2, v0\n    s_setprio 0\n"
tests = {
 "full": variant(lambda s: s),
 "nowr": variant(lambda s: [l for l in s if "ds_write" not in l]),
 "noprio": variant(lambda s: [l for l in s if "s_setprio" not in l]),
 "nobar": variant(lambda s: [s[0]] + [l for l in s[1:] if "s_barrier" not in l]),
 "nods": variant(lambda s: [l for l in s if "ds_" not in l]),
 "novalu": variant(lambda s: [l for l in s if not re.match(r"\s*v_(fma|cvt|pk|perm|mov_b32_dpp|add_f32)", l)]),
 "nomfma": variant(lambda s: [l for l in s if "mfma" not in l]),
 "nowait": variant(lambda s: [l for l in s if "s_waitcnt" not in l]),
 "prioB": variant(lambda s: [l.replace("s_setprio 1", "s_setprio 0").replace("L_late:", "L_late:\n    s_setprio 1") for l in s]),
}
mb.HEAD = mb.HEAD.replace("v_cmp_eq_u32 vcc, 0, v2", "v_cmp_eq_u32 vcc, 0, v6").replace("next_free_sgpr 64", "next_free_sgpr 102")
if __name__ == "__main__":
    mode = sys.argv[1]
    for name, body in tests.items():
        if mode == "build":
            build("pc_" + name, body, init=init, lds=163840, iters=50, nvgpr=256)
        else:
            out = run(f"mbout/pc_{name}.co", 512, lds=163840)
            print(f"{name:10s} cycles per pass:", out[:8].max() / 50, flush=True)
```

```python
from mb import *
import mb, sys, re
L = open("k5.s").read().split("\n")
bar = [i for i, l in enumerate(L) if "s_barrier" in l]
i0 = [i for i in range(bar[4], len(L)) if "v_mfma" in L[i]][0]
i1 = [i for i, l in enumerate(L) if "s_cbranch_scc0 L_chores" in l][0] - 1
seg = []; skip = None
for l in L[i0:i1]:
    t = l.strip()
    if skip:
        if t == skip + ":": skip = None
        continue
    if t.startswith("s_cbranch"): skip = t.split()[1]; continue
    if t.startswith("s_cmp"): continue
    seg.append(l)
seg = [re.sub(r"s\[68:69\]", "s[40:41]", re.sub(r"\bs9\d\b|\bs8\d\b", "0", l)) for l in seg]
init = "\n".join(f"    v_mov_b32 v{i}, 1.0" for i in range(13, 256)) + """
    s_mov_b32 s40, 1.0
    s_mov_b32 s41, 1.0
    v_lshlrev_b32 v4, 3, v2
    v_mov_b32 v10, v4
    v_mov_b32 v5, v4
    v_lshlrev_b32 v8, 4, v2
    v_mov_b32 v9, v8
    v_mov_b32 v1, v8
    v_lshlrev_b32 v12, 2, v2
    v_mov_b32 v11, v12
    v_lshl_add_u32 v6, v2, 20, 0
"""
def var(f): return "\n".join(f(seg)) + "\n    s_waitcnt lgkmcnt(0)\n"
tests = {"full": var(lambda s: s), "nods": var(lambda s: [l for l in s if "ds_" not in l and "waitcnt" not in l]),
         "norem": var(lambda s: [l for l in s if "v[240:255]" not in l]),
         "nomf": var(lambda s: [l for l in s if "mfma" not in l]),
         "valuonly": var(lambda s: [l for l in s if "mfma" not in l and "ds_" not in l and "waitcnt" not in l and "s_nop" not in l])}
if __name__ == "__main__":
    for name, body in tests.items():
        if sys.argv[1] == "build": build("lp_" + name, body, init=init, lds=65536, nvgpr=256, iters=30)
        else:
            res = [run(f"mbout/lp_{name}.co", 256 * w, lds=65536)[:4*w].max() / 30 for w in (1, 2)]
            print(f"{name:10s} cycles per pass (1,2 waves):", " ".join(f"{r:8.0f}" for r in res), flush=True)
```
